```python
import torch

def _softmax(x, axis=-1):
    return torch.softmax(x, dim=axis)
def _gelu(x):
    return torch.nn.functional.gelu(x, approximate="tanh")
def _silu(x):
    return torch.nn.functional.silu(x)
def _sigmoid(x):
    return torch.sigmoid(x)
def _layernorm(x, axis=-1, eps=1e-5):
    m = x.mean(dim=axis, keepdim=True)
    v = x.var(dim=axis, keepdim=True, unbiased=False)
    return (x - m) / torch.sqrt(v + eps)
def _scatter_add(tgt, idx, src, axis=0):
    return tgt.clone().index_add_(axis, idx, src)
def _segment_sum(src, seg, n):
    out = torch.zeros((n,) + src.shape[1:], dtype=src.dtype)
    return out.index_add_(0, seg, src)
def _pad(x, pw):
    flat = tuple(v for pair in reversed(pw) for v in pair)
    return torch.nn.functional.pad(x, flat)

kernel_name = 'sequential_preLN__grouped_kv_mqa__glu_gated_swiglu__prompt'

def setup_inputs():

    _w = (lambda a: (lambda t: t.to(torch.bfloat16) if t.is_floating_point() else t)(torch.as_tensor(a)))
    def _A_setup():
        B, S, D, H = 1, 2048, 640, 32
        Dh = D // H
        return {
            "x": _w((lambda *s: torch.randn(*s, dtype=torch.bfloat16) * 0.05)(B, S, D)),
            "wq": _w((lambda *s: torch.randn(*s, dtype=torch.bfloat16) * 0.05)(D, H * Dh)),
            "wk": _w((lambda *s: torch.randn(*s, dtype=torch.bfloat16) * 0.05)(D, Dh)),
            "wv": _w((lambda *s: torch.randn(*s, dtype=torch.bfloat16) * 0.05)(D, Dh)),
            "wo": _w((lambda *s: torch.randn(*s, dtype=torch.bfloat16) * 0.05)(H * Dh, D)),
        }
    _A_in = _A_setup()

    def _B_setup():
        B, S, D, F = 1, 2048, 640, 1728
        return {
            "x": _w((lambda *s: torch.randn(*s, dtype=torch.bfloat16) * 0.05)(B, S, D)),
            "w1": _w((lambda *s: torch.randn(*s, dtype=torch.bfloat16) * 0.4)(D, F) * (2.0 / D) ** 0.5),
            "w3": _w((lambda *s: torch.randn(*s, dtype=torch.bfloat16) * 0.4)(D, F) * (2.0 / D) ** 0.5),
            "w2": _w((lambda *s: torch.randn(*s, dtype=torch.bfloat16) * 0.4)(F, D) * (2.0 / F) ** 0.5),
        }
    _B_in = _B_setup()

    return {
        "A_x": _A_in["x"],
        "A_wq": _A_in["wq"],
        "A_wk": _A_in["wk"],
        "A_wv": _A_in["wv"],
        "A_wo": _A_in["wo"],
        "B_x": _B_in["x"],
        "B_w1": _B_in["w1"],
        "B_w3": _B_in["w3"],
        "B_w2": _B_in["w2"],
    }

def reference(A_x, A_wq, A_wk, A_wv, A_wo, B_x, B_w1, B_w3, B_w2):
    def _A_ref(x, wq, wk, wv, wo):
        B, S, D = x.shape
        H = 32
        Dh = D // H
        q = (lambda x, *d: x.permute(*d))((x @ wq).reshape(B, S, H, Dh), 0, 2, 1, 3)
        k = x @ wk
        v = x @ wv
        scores = torch.einsum("bhqd,bkd->bhqk", q, k) * (Dh ** -0.5)
        p = _softmax(scores, axis=-1)
        o = torch.einsum("bhqk,bkd->bhqd", p, v)
        return (lambda x, *d: x.permute(*d))(o, 0, 2, 1, 3).reshape(B, S, H * Dh) @ wo

    def _B_ref(x, w1, w3, w2):
        gate = torch.einsum("bsd,df->bsf", x, w1)
        up = torch.einsum("bsd,df->bsf", x, w3)
        h = _silu(gate) * up
        out = torch.einsum("bsf,fd->bsd", h, w2)
        return out

    x = A_x
    h = x + _A_ref(_layernorm(x, axis=-1), A_wq, A_wk, A_wv, A_wo)
    h2 = h + _B_ref(_layernorm(h, axis=-1), B_w1, B_w3, B_w2)
    return h2
```

```python
HEADER = '.amdgcn_target "amdgcn-amd-amdhsa--gfx950"\n.text\n'
def kernel(name, idx, body, iters, init="", vgpr=256, accum=None, post=""):
    if accum is None: accum = min(256, (vgpr + 3)//4*4)
    loop = f"""
.p2align 6
{name}_loop:
{body}
    s_sub_u32 s22, s22, 1
    s_cmp_lg_u32 s22, 0
    s_cbranch_scc1 {name}_loop
""" if iters > 0 else body
    s = f"""
.globl {name}
.p2align 8
.type {name},@function
{name}:
    s_memrealtime s[32:33]
    s_load_dwordx2 s[4:5], s[0:1], 72
    s_load_dwordx2 s[6:7], s[0:1], 0
    s_load_dwordx2 s[20:21], s[0:1], 88
    v_lshrrev_b32 v1, 6, v0
    s_nop 0
    v_readfirstlane_b32 s3, v1
    s_getreg_b32 s36, hwreg(HW_REG_XCC_ID)
    s_waitcnt lgkmcnt(0)
    s_mov_b32 s12, s6
    s_mov_b32 s13, s7
    s_mov_b32 s14, 0x1000000
    s_mov_b32 s15, 0x00020000
    s_mov_b32 s16, s20
    s_mov_b32 s17, s21
    s_mov_b32 s18, 0x10000000
    s_mov_b32 s19, 0x00020000
{init}
    s_mov_b32 s22, {iters}
    s_waitcnt vmcnt(0) lgkmcnt(0)
    s_memtime s[8:9]
    s_waitcnt lgkmcnt(0)
{loop}
    s_waitcnt vmcnt(0) lgkmcnt(0)
    s_memtime s[10:11]
    s_memrealtime s[34:35]
    s_waitcnt lgkmcnt(0)
{post}
    s_sub_u32 s10, s10, s8
    s_mul_i32 s23, s2, s24
    s_add_u32 s23, s23, s3
    s_lshl_b32 s23, s23, 4
    s_add_u32 s23, s23, {idx*65536*4}
    v_mov_b32 v2, s23
    v_mov_b32 v4, s10
    v_mov_b32 v5, s32
    v_mov_b32 v6, s34
    v_mov_b32 v7, s36
    s_mov_b32 s28, s4
    s_mov_b32 s29, s5
    s_mov_b32 s30, 0x4000000
    s_mov_b32 s31, 0x00020000
    s_nop 4
    buffer_store_dwordx4 v[4:7], v2, s[28:31], 0 offen
    s_waitcnt vmcnt(0)
    s_endpgm
"""
    kd = f"""
.amdhsa_kernel {name}
  .amdhsa_next_free_vgpr {vgpr}
  .amdhsa_next_free_sgpr 102
  .amdhsa_accum_offset {accum}
  .amdhsa_group_segment_fixed_size 0
  .amdhsa_kernarg_size 96
  .amdhsa_user_sgpr_count 2
  .amdhsa_user_sgpr_kernarg_segment_ptr 1
  .amdhsa_system_sgpr_workgroup_id_x 1
.end_amdhsa_kernel
"""
    return s, kd

def make(tests, path):
    launch = ""; code = ""; kds = ""
    for i, t in enumerate(tests):
        name = t["name"] + "_kernel"
        wpw = t["block"] // 64
        init = f"    s_mov_b32 s24, {wpw}\n" + t.get("init", "")
        s, kd = kernel(name, i, t["body"], t.get("iters", 1000), init, t.get("vgpr", 128), t.get("accum"), t.get("post", ""))
        for _ in range(t.get("dup", 1)):
          launch += f"; @launch kernel={name} grid=({t['grid']},1,1) block=({t['block']},1,1) lds={t.get('lds',0)}\n"
        code += s
        kds += ".p2align 6\n" + kd
    open(path, "w").write(launch + HEADER + code + '.section .rodata,"a"\n' + kds)
```

```python
from mb_gen2 import *
tests = []
tests.append(dict(name="warmup", body="", iters=0, grid=256, block=256, vgpr=64))
def frag(name, R, depth=8, blk=256, total=256<<10, nper=8):
    import math
    sh = int(math.log2(R))
    cb = (64 // R) * 16
    init = f"""
    v_and_b32 v9, 63, v0
    v_and_b32 v10, {R-1}, v9
    s_mov_b32 s42, 1280
    v_mul_lo_u32 v10, v10, s42
    v_lshrrev_b32 v11, {sh}, v9
    v_lshlrev_b32 v11, 4, v11
    v_add_u32 v10, v10, v11
    s_mul_i32 s40, s3, {R*1280}
    s_lshr_b32 s44, s2, 3
    s_mul_i32 s44, s44, {64*1280}
    s_add_u32 s40, s40, s44
    v_add_u32 v10, s40, v10
    s_mov_b32 s41, 0
"""
    body = ""
    n = 1280 // cb
    for j in range(n):
        body += f"    buffer_load_dwordx4 v[{16+4*(j%10)}:{19+4*(j%10)}], v10, s[12:15], s41 offen offset:{cb*j}\n"
        body += f"    s_waitcnt vmcnt({depth-1})\n"
    wp = blk // 64
    body += f"    s_add_u32 s41, s41, {R*wp*1280}\n    s_cmp_ge_u32 s41, {1280*1024}\n    s_cselect_b32 s41, 0, s41\n"
    iters = total // (n * 1024 * wp)
    return dict(name=name, body=body, iters=iters, grid=256, block=blk, vgpr=64, init=init, lds=0, dup=2)
tests.append(frag("f16_d8", 16, 8, total=320<<10))
tests.append(frag("f16_d10", 16, 10, total=320<<10))
tests.append(frag("f32_d8", 32, 8, total=320<<10))
tests.append(frag("f32_d10", 32, 10, total=320<<10))
tests.append(frag("f16_512", 16, 8, blk=512, total=320<<10))
tests.append(frag("f32_512", 32, 8, blk=512, total=320<<10))
make(tests, "mb9.s")
```
